```python
import torch

def _softmax(x, axis=-1):
    return torch.softmax(x, dim=axis)
def _gelu(x):
    return torch.nn.functional.gelu(x, approximate="tanh")
def _silu(x):
    return torch.nn.functional.silu(x)
def _sigmoid(x):
    return torch.sigmoid(x)
def _layernorm(x, axis=-1, eps=1e-5):
    m = x.mean(dim=axis, keepdim=True)
    v = x.var(dim=axis, keepdim=True, unbiased=False)
    return (x - m) / torch.sqrt(v + eps)
def _scatter_add(tgt, idx, src, axis=0):
    return tgt.clone().index_add_(axis, idx, src)
def _segment_sum(src, seg, n):
    out = torch.zeros((n,) + src.shape[1:], dtype=src.dtype)
    return out.index_add_(0, seg, src)
def _pad(x, pw):
    flat = tuple(v for pair in reversed(pw) for v in pair)
    return torch.nn.functional.pad(x, flat)

kernel_name = 'sequential_preLN__softmax_full_mha__geglu_ffn__prompt'

def setup_inputs():

    _w = (lambda a: (lambda t: t.to(torch.bfloat16) if t.is_floating_point() else t)(torch.as_tensor(a)))
    def _A_setup():
        B, S, D = 1, 2048, 512
        return {
            "x": _w((lambda *s: torch.randn(*s, dtype=torch.bfloat16) * 0.05)(B, S, D)),
            "wqkv": _w((lambda *s: torch.randn(*s, dtype=torch.bfloat16) * 0.05)(D, 3 * D)),
            "wo": _w((lambda *s: torch.randn(*s, dtype=torch.bfloat16) * 0.05)(D, D)),
        }
    _A_in = _A_setup()

    def _B_setup():
        B, S, D, F = 1, 2048, 512, 1792
        return {
            "x": _w((lambda *s: torch.randn(*s, dtype=torch.bfloat16) * 0.05)(B, S, D)),
            "w_gate": _w((lambda *s: torch.randn(*s, dtype=torch.bfloat16) * 0.05)(D, F)),
            "w_up": _w((lambda *s: torch.randn(*s, dtype=torch.bfloat16) * 0.05)(D, F)),
            "w_down": _w((lambda *s: torch.randn(*s, dtype=torch.bfloat16) * 0.05)(F, D)),
        }
    _B_in = _B_setup()

    return {
        "A_x": _A_in["x"],
        "A_wqkv": _A_in["wqkv"],
        "A_wo": _A_in["wo"],
        "B_x": _B_in["x"],
        "B_w_gate": _B_in["w_gate"],
        "B_w_up": _B_in["w_up"],
        "B_w_down": _B_in["w_down"],
    }

def reference(A_x, A_wqkv, A_wo, B_x, B_w_gate, B_w_up, B_w_down):
    def _A_ref(x, wqkv, wo):
        B, S, D = x.shape
        H = 32; Dh = D // H
        qkv = (lambda x, *d: x.permute(*d))((x @ wqkv).reshape(B, S, 3, H, Dh), 2, 0, 3, 1, 4)
        q, k, v = qkv[0], qkv[1], qkv[2]
        scale = Dh ** -0.5
        scores = torch.einsum("bhqd,bhkd->bhqk", q, k) * scale
        p = _softmax(scores, axis=-1)
        o = torch.einsum("bhqk,bhkd->bhqd", p, v)
        return (lambda x, *d: x.permute(*d))(o, 0, 2, 1, 3).reshape(B, S, D) @ wo

    def _B_ref(x, w_gate, w_up, w_down):
        return (_gelu(x @ w_gate) * (x @ w_up)) @ w_down

    x = A_x
    h = x + _A_ref(_layernorm(x, axis=-1), A_wqkv, A_wo)
    h2 = h + _B_ref(_layernorm(h, axis=-1), B_w_gate, B_w_up, B_w_down)
    return h2
```

```python
import re

TRANS = ("v_exp_f32", "v_log_f32", "v_rcp_f32", "v_rsq_f32", "v_sqrt_f32", "v_sin_f32", "v_cos_f32")

_reg_re = re.compile(r"\b([vas])(\d+)\b|\b([vas])\[(\d+):(\d+)\]|\b(vcc|exec|m0|scc|vcc_lo|vcc_hi|exec_lo|exec_hi)\b")

def regs_of(opnd):
    out = []
    for m in _reg_re.finditer(opnd):
        if m.group(1):
            out.append((m.group(1), int(m.group(2))))
        elif m.group(3):
            for i in range(int(m.group(4)), int(m.group(5)) + 1):
                out.append((m.group(3), i))
        else:
            n = m.group(6)
            n = {"vcc_lo": "vcc", "vcc_hi": "vcc", "exec_lo": "exec", "exec_hi": "exec"}.get(n, n)
            out.append(("x", n))
    return out

def split_ops(s):
    ops, cur, d = [], "", 0
    for ch in s:
        if ch == "[": d += 1
        if ch == "]": d -= 1
        if ch == "," and d == 0:
            ops.append(cur.strip()); cur = ""
        else:
            cur += ch
    if cur.strip(): ops.append(cur.strip())
    return ops

class Ins:
    def __init__(self, text):
        self.text = text
        t = text.split(";")[0].strip()
        self.label = t.endswith(":")
        self.op = t.split()[0] if t else ""
        rest = t[len(self.op):].strip()
        self.ops = split_ops(rest)
        self.reads, self.writes = set(), set()
        self.kind = "other"
        self.srcc = set(); self.srcab = set()
        self.passes = 0
        self.states = 1
        op = self.op
        if self.label or not op or op.startswith("."):
            self.kind = "pseudo"; self.states = 0; return
        o = self.ops
        R = lambda i: set(regs_of(o[i])) if i < len(o) else set()
        if op == "s_nop":
            self.kind = "nop"; self.states = int(o[0], 0) + 1; return
        if op.startswith("v_mfma"):
            self.kind = "mfma"
            self.passes = 8 if "32x32x16" in op else 4
            self.writes = R(0); self.srcab = R(1) | R(2); self.srcc = R(3)
            self.reads = self.srcab | self.srcc
            return
        if op.startswith("v_"):
            self.kind = "valu"
            base = op.replace("_e32", "").replace("_e64", "").replace("_dpp", "").replace("_sdwa", "")
            self.base = base
            self.trans = base in TRANS
            self.dpp = "_dpp" in op
            self.dot = base.startswith("v_dot")
            self.perml = base.startswith("v_permlane")
            if base.startswith("v_cmp"):
                self.writes = R(0)
                for i in range(1, len(o)): self.reads |= R(i)
            elif base in ("v_readfirstlane_b32", "v_readlane_b32"):
                self.writes = R(0)
                for i in range(1, len(o)): self.reads |= R(i)
            elif self.perml:
                self.writes = R(0) | R(1); self.reads = R(0) | R(1)
            elif base in ("v_add_co_u32", "v_sub_co_u32", "v_addc_co_u32", "v_subb_co_u32"):
                self.writes = R(0) | R(1)
                for i in range(2, len(o)): self.reads |= R(i)
            else:
                self.writes = R(0)
                for i in range(1, len(o)):
                    self.reads |= set(regs_of(o[i].split(" ")[0] if not o[i].startswith("-") and not o[i].startswith("abs") and not o[i].startswith("|") else o[i]))
                if base in ("v_fmac_f32", "v_dot2c_f32_bf16") or self.dpp or "_sdwa" in op:
                    self.reads |= R(0)
            return
        if op.startswith("buffer_") or op.startswith("global_"):
            self.kind = "vmem"
            lds = " lds" in (" " + rest) or "_lds_" in op
            self.lds = lds
            allr = set()
            for i in range(len(o)): allr |= set(regs_of(o[i].split(" ")[0]))
            if "load" in op and not lds:
                self.writes = R(0)
                for i in range(1, len(o)): self.reads |= set(regs_of(o[i].split(" ")[0]))
            else:
                self.reads = allr
                if lds: self.reads.add(("x", "m0"))
            self.widestore = ("store" in op) and ("x4" in op or "x3" in op)
            if self.widestore:
                self.sdata = R(0) if op.startswith("buffer_") else R(1)
            return
        if op.startswith("ds_"):
            self.kind = "ds"
            if "read" in op or "swizzle" in op or "permute" in op:
                self.writes = R(0)
                for i in range(1, len(o)): self.reads |= set(regs_of(o[i].split(" ")[0]))
            else:
                for i in range(len(o)): self.reads |= set(regs_of(o[i].split(" ")[0]))
            return
        if op.startswith("s_"):
            self.kind = "salu"
            if op.startswith("s_cmp") or op.startswith("s_cbranch") or op in ("s_branch", "s_barrier", "s_waitcnt", "s_endpgm", "s_setprio", "s_sleep"):
                for i in range(len(o)): self.reads |= R(i)
            else:
                self.writes = R(0)
                for i in range(1, len(o)): self.reads |= R(i)
            return

def need_states(p, c):
    n = 0
    vw = {r for r in p.writes if r[0] in "va"}
    sw = {r for r in p.writes if r[0] in "sx"}
    if p.kind == "valu":
        if vw:
            if c.kind == "mfma" and (vw & c.reads): n = max(n, 2)
            if c.kind == "valu":
                if p.trans and not c.trans and (vw & (c.reads | c.writes)): n = max(n, 1)
                if p.trans and c.trans and (vw & c.reads): n = max(n, 1)
                if c.dpp and (vw & c.reads): n = max(n, 2)
                if c.perml and (vw & c.reads): n = max(n, 2)
                if c.base in ("v_readfirstlane_b32", "v_readlane_b32") and (vw & c.reads): n = max(n, 1)
                if "_sdwa" in p.op and (vw & (c.reads | c.writes)): n = max(n, 1)
                if p.dot and (vw & (c.reads | c.writes)):
                    if not (c.base == p.base and not (vw & (c.reads - c.writes))):
                        n = max(n, 3)
            if p.dot and c.kind in ("vmem", "ds", "mfma") and (vw & c.reads): n = max(n, 3)
            if p.trans and c.kind in ("vmem", "ds") and (vw & c.reads): n = max(n, 1)
        if sw:
            if c.kind == "valu" and (sw & c.reads): n = max(n, 4 if c.base in ("v_readlane_b32", "v_writelane_b32") else 2)
            if c.kind == "vmem" and (sw & c.reads): n = max(n, 5)
            if c.kind == "salu" and (sw & c.reads): n = max(n, 1)
            if c.kind == "salu" and c.op.startswith("s_cbranch_vcc") and ("x", "vcc") in sw: n = max(n, 1)
    if p.kind == "mfma":
        big = {8: 12, 4: 8}[p.passes]
        if c.kind == "mfma":
            if vw & c.srcab: n = max(n, big)
            if vw & c.srcc and not (c.srcc == p.writes and c.passes == p.passes): n = max(n, {8: 10, 4: 6}[p.passes])
            if (vw & c.writes) and not (c.srcc == p.writes): n = max(n, big)
        elif c.kind in ("valu", "vmem", "ds"):
            if vw & (c.reads | c.writes): n = max(n, big)
        if c.kind == "valu" and (p.srcc & c.writes): n = max(n, {8: 7, 4: 3}[p.passes])
        if c.kind in ("vmem", "ds") and (p.srcc & c.writes): n = max(n, {8: 7, 4: 3}[p.passes])
    if p.kind == "salu":
        if ("x", "m0") in p.writes and c.kind == "vmem" and getattr(c, "lds", False): n = max(n, 1)
    if p.kind == "vmem" and getattr(p, "widestore", False):
        if p.sdata & c.writes: n = max(n, 2)
    return n

class Kernel:
    def __init__(self, name):
        self.name = name
        self.ins = []
        self.nops_added = 0
    def __call__(self, text):
        for line in text.strip("\n").split("\n"):
            line = line.strip()
            if not line or line.startswith(";"):
                continue
            self._add(Ins(line))
    def _add(self, ins):
        if ins.kind not in ("pseudo", "nop"):
            dist = 0; need = 0
            for p in reversed(self.ins):
                if dist >= 13: break
                if p.kind not in ("pseudo", "nop"):
                    k = need_states(p, ins)
                    if k - dist > need: need = k - dist
                dist += p.states
            while need > 0:
                k = min(need, 16)
                self.ins.append(Ins(f"s_nop {k-1}")); self.nops_added += k
                need -= k
        self.ins.append(ins)
    def label(self, l):
        self.ins.append(Ins(l + ":"))
    def pad(self, n=13):
        while n > 0:
            k = min(n, 16); self.ins.append(Ins(f"s_nop {k-1}")); n -= k
    def check_loop(self, start_label):
        idx = [i for i, x in enumerate(self.ins) if x.label and x.text.strip() == start_label + ":"][0]
        body = self.ins[idx:]
        seq = body + body
        n = len(body)
        for ci in range(n, 2 * n):
            c = seq[ci]
            if c.kind in ("pseudo", "nop"): continue
            dist = 0
            for pi in range(ci - 1, -1, -1):
                p = seq[pi]
                if dist >= 13: break
                if p.kind not in ("pseudo", "nop"):
                    k = need_states(p, c)
                    assert k <= dist, f"loop hazard {p.text} -> {c.text} need {k} have {dist}"
                dist += p.states
    def text(self):
        out = [f".globl {self.name}", ".p2align 8", f".type {self.name},@function", f"{self.name}:"]
        for i in self.ins:
            out.append(("" if i.label else "    ") + i.text)
        return "\n".join(out) + "\n"
    def max_regs(self):
        mv = ma = ms = -1
        for i in self.ins:
            for r in i.reads | i.writes:
                if r[0] == "v": mv = max(mv, r[1])
                if r[0] == "a": ma = max(ma, r[1])
                if r[0] == "s": ms = max(ms, r[1])
        return mv + 1, ma + 1, ms + 1
    def descriptor(self):
        nv, na, ns = self.max_regs()
        acc = max(4, (nv + 3) // 4 * 4)
        tot = acc + na if na else nv
        return f""".amdhsa_kernel {self.name}
  .amdhsa_next_free_vgpr {tot}
  .amdhsa_next_free_sgpr {max(ns, 16)}
  .amdhsa_accum_offset {acc}
  .amdhsa_group_segment_fixed_size 0
  .amdhsa_kernarg_size 80
  .amdhsa_user_sgpr_count 2
  .amdhsa_user_sgpr_kernarg_segment_ptr 1
  .amdhsa_system_sgpr_workgroup_id_x 1
.end_amdhsa_kernel
"""

class Alloc:
    def __init__(self, start=1, pref="v"):
        self.n = start; self.pref = pref
    def get(self, cnt=1, align=1):
        self.n = (self.n + align - 1) // align * align
        r = self.n; self.n += cnt
        return r

def vr(b, n=1, p="v"):
    return f"{p}{b}" if n == 1 else f"{p}[{b}:{b+n-1}]"
```

```python
import sys, math, struct
from asmb import *

QF = 0x000000
KF = 0x200000
VF = 0x400000
OF = 0x600000
HF = 0x800000
GF = 0xA00000
KN = 0x1100000
WS_SIZE = 0x1110000

def f32(x):
    return "0x%08x" % struct.unpack("<I", struct.pack("<f", x))[0]

LOG2E = 1.4426950408889634
QSCALE = 0.25 * LOG2E
ONES_BF16 = "0x3f803f80"

def magic(div, maxv):
    for sh in range(8, 24):
        m = (1 << sh) // div + 1
        if all((x * m) >> sh == x // div for x in range(maxv)) and m * maxv < (1 << 24):
            return m, sh
    raise ValueError

def srd(k, d, lo, hi, size):
    k(f"s_mov_b32 s{d}, s{lo}")
    k(f"s_and_b32 s{d+1}, s{hi}, 0xffff")
    k(f"s_mov_b32 s{d+2}, {size}")
    k(f"s_mov_b32 s{d+3}, 0x20000")

class VM:
    def __init__(self): self.tags = []
    def issue(self, tag): self.tags.append(tag)
    def wait_for(self, tag):
        idx = max(i for i, t in enumerate(self.tags) if t == tag)
        return len(self.tags) - 1 - idx

def dma(k, vm, tag, ldsaddr_sreg_or_imm, voff, srdreg, soff):
    k(f"s_mov_b32 m0, {ldsaddr_sreg_or_imm}")
    k(f"buffer_load_dwordx4 v{voff}, s[{srdreg}:{srdreg+3}], {soff} offen lds")
    vm.issue(tag)

def half_sum(k, v, tmp):
    k(f"v_mov_b32 v{tmp}, v{v}")
    k(f"v_permlane32_swap_b32 v{v}, v{tmp}")
    k(f"v_add_f32 v{v}, v{v}, v{tmp}")

def k1():
    k = Kernel("qkv_kernel")
    vm = VM()
    A = Alloc(1)
    k("s_cmp_ge_u32 s2, 256")
    k("s_cbranch_scc1 qkv_end")
    k("s_load_dwordx4 s[4:7], s[0:1], 0")
    k("s_load_dwordx2 s[8:9], s[0:1], 72")
    lane = A.get(); t0 = A.get(); t1 = A.get(); t2 = A.get(); t3 = A.get()
    k(f"v_and_b32 v{lane}, 63, v0")
    k(f"v_lshrrev_b32 v{t0}, 6, v0")
    k(f"v_readfirstlane_b32 s24, v{t0}")
    k("s_and_b32 s25, s2, 7")
    k("s_lshr_b32 s26, s2, 3")
    k("s_and_b32 s27, s25, 1")
    k("s_lshl_b32 s27, s27, 2")
    k("s_and_b32 s28, s26, 3")
    k("s_add_u32 s27, s27, s28")
    k("s_lshr_b32 s28, s25, 1")
    k("s_lshl_b32 s28, s28, 3")
    k("s_lshr_b32 s29, s26, 2")
    k("s_add_u32 s28, s28, s29")
    k("s_and_b32 s29, s24, 1")
    k("s_lshr_b32 s30, s24, 1")
    vx = [A.get(), A.get()]
    vw = [A.get(), A.get(), A.get()]
    k(f"v_lshrrev_b32 v{t0}, 3, v{lane}")
    k(f"v_and_b32 v{t1}, 7, v{lane}")
    k(f"v_lshrrev_b32 v{t2}, 1, v{t0}")
    for jj in range(2):
        k(f"v_xor_b32 v{t3}, v{t1}, v{t2}")
        if jj: k(f"v_xor_b32 v{t3}, 4, v{t3}")
        k(f"v_lshlrev_b32 v{t3}, 4, v{t3}")
        k(f"v_lshl_add_u32 v{vx[jj]}, v{t0}, 10, v{t3}")
        if jj: k(f"v_add_u32 v{vx[jj]}, 8192, v{vx[jj]}")
    m24, sh24 = magic(24, 192)
    for b in range(3):
        k(f"v_add_u32 v{t0}, {64*b}, v{lane}")
        k(f"v_mul_u32_u24 v{t1}, {m24}, v{t0}")
        k(f"v_lshrrev_b32 v{t1}, {sh24}, v{t1}")
        k(f"v_mul_u32_u24 v{t2}, 24, v{t1}")
        k(f"v_sub_u32 v{t0}, v{t0}, v{t2}")
        k(f"v_bfe_u32 v{t2}, v{t1}, 1, 1")
        k(f"v_lshrrev_b32 v{t3}, 2, v{t0}")
        k(f"v_xor_b32 v{t3}, v{t3}, v{t2}")
        k(f"v_and_b32 v{t0}, 3, v{t0}")
        k(f"v_lshlrev_b32 v{t0}, 4, v{t0}")
        k(f"v_mul_u32_u24 v{t1}, 3072, v{t1}")
        k(f"v_add_u32 v{t0}, v{t0}, v{t1}")
        k(f"v_lshrrev_b32 v{t1}, 1, v{t3}")
        k(f"v_lshl_add_u32 v{t0}, v{t1}, 10, v{t0}")
        k(f"v_and_b32 v{t1}, 1, v{t3}")
        k(f"v_lshl_add_u32 v{vw[b]}, v{t1}, 6, v{t0}")
    k("s_lshl_b32 s31, s28, 6")
    k("s_lshl_b32 s32, s24, 4")
    k("s_add_u32 s31, s31, s32")
    k("s_lshl_b32 s31, s31, 10")
    k("s_mul_i32 s32, s32, 3072")
    k("s_lshl_b32 s33, s27, 7")
    k("s_add_u32 s32, s32, s33")
    k("s_lshl_b32 s33, s24, 11")
    k("s_mul_i32 s34, s24, 6144")
    k("s_add_u32 s34, s34, 8192")
    k("s_waitcnt lgkmcnt(0)")
    srd(k, 12, 4, 5, 2048*1024)
    srd(k, 16, 6, 7, 512*3072)
    srd(k, 20, 8, 9, WS_SIZE)
    def issue_chunk(c):
        sl = (c % 5) * 32768
        k(f"s_add_u32 s35, s31, {c*128}")
        for jj in range(2):
            k(f"s_add_u32 s36, s33, {sl + jj*1024}")
            dma(k, vm, c, "s36", vx[jj], 12, "s35")
        for a in range(2):
            k(f"s_add_u32 s35, s32, {(c*64 + 8*a)*3072}")
            for b in range(3):
                k(f"s_add_u32 s36, s34, {sl + (3*a+b)*1024}")
                dma(k, vm, c, "s36", vw[b], 16, "s35")
    for c in range(5): issue_chunk(c)
    ax = [[A.get() for s in range(4)] for wdw in range(3)]
    aw = [A.get() for wdw in range(3)]
    k(f"v_and_b32 v{t0}, 31, v{lane}")
    k(f"v_lshrrev_b32 v{t1}, 5, v{lane}")
    k(f"v_bfe_u32 v{t2}, v{lane}, 1, 3")
    k(f"v_xor_b32 v{t2}, v{t2}, v{t1}")
    k(f"v_lshlrev_b32 v{t2}, 4, v{t2}")
    k(f"v_lshl_add_u32 v{t2}, v{t0}, 7, v{t2}")
    k("s_lshl_b32 s35, s29, 12")
    k(f"v_add_u32 v{ax[0][0]}, s35, v{t2}")
    for s in range(1, 4):
        k(f"v_xor_b32 v{ax[0][s]}, {32*s}, v{ax[0][0]}")
    k(f"v_bfe_u32 v{t0}, v{lane}, 2, 2")
    k(f"v_lshl_add_u32 v{t2}, v{t1}, 3, v{t0}")
    k(f"v_mul_u32_u24 v{t2}, 384, v{t2}")
    k(f"v_lshrrev_b32 v{t0}, 1, v{t0}")
    k(f"v_xor_b32 v{t0}, s30, v{t0}")
    k(f"v_lshl_add_u32 v{t2}, v{t0}, 6, v{t2}")
    k(f"v_bfe_u32 v{t0}, v{lane}, 4, 1")
    k(f"v_lshl_add_u32 v{t2}, v{t0}, 5, v{t2}")
    k(f"v_and_b32 v{t0}, 3, v{lane}")
    k(f"v_lshl_add_u32 v{t2}, v{t0}, 3, v{t2}")
    k(f"v_add_u32 v{aw[0]}, 8192, v{t2}")
    for wdw in (1, 2):
        for s in range(4):
            k(f"v_add_u32 v{ax[wdw][s]}, {65536*wdw}, v{ax[0][s]}")
        k(f"v_add_u32 v{aw[wdw]}, {65536*wdw}, v{aw[0]}")
    ones = A.get(); ssum = A.get(); ssq = A.get(); cs = [A.get() for _ in range(3)]
    k(f"v_mov_b32 v{ones}, {ONES_BF16}")
    for r in [ssum, ssq] + cs: k(f"v_mov_b32 v{r}, 0")
    xf = [A.get(4, 4) for _ in range(2)]
    wf = [[A.get(4, 4) for p in range(3)] for _ in range(2)]
    acc = [A.get(16, 4) for _ in range(3)]
    def reads(step):
        c, s = divmod(step, 4)
        sl = c % 5; wdw = sl >> 1; so = (sl & 1) * 32768
        b = step & 1
        k(f"ds_read_b128 {vr(xf[b],4)}, v{ax[wdw][s]} offset:{so}")
        for p in range(3):
            for e in range(2):
                k(f"ds_read_b64_tr_b16 {vr(wf[b][p]+2*e,2)}, v{aw[wdw]} offset:{so + (16*s+4*e)*384 + p*128}")
    k(f"s_waitcnt vmcnt({vm.wait_for(0)})")
    k("s_barrier")
    reads(0)
    for step in range(32):
        b = step & 1
        if step + 1 < 32:
            if (step + 1) % 4 == 0:
                c1 = (step + 1) // 4
                k(f"s_waitcnt vmcnt({vm.wait_for(c1)})")
                k("s_barrier")
                if c1 in (2, 3, 4): issue_chunk(c1 + 3)
            reads(step + 1)
            k("s_waitcnt lgkmcnt(7)")
        else:
            k("s_waitcnt lgkmcnt(0)")
        cc = lambda p: "0" if step == 0 else vr(acc[p], 16)
        k(f"v_mfma_f32_32x32x16_bf16 {vr(acc[0],16)}, {vr(wf[b][0],4)}, {vr(xf[b],4)}, {cc(0)}")
        for d in range(2):
            k(f"v_dot2c_f32_bf16 v{ssum}, v{xf[b]+d}, v{ones}")
            k(f"v_dot2c_f32_bf16 v{ssq}, v{xf[b]+d}, v{xf[b]+d}")
            for p in range(3): k(f"v_dot2c_f32_bf16 v{cs[p]}, v{wf[b][p]+d}, v{ones}")
        k(f"v_mfma_f32_32x32x16_bf16 {vr(acc[1],16)}, {vr(wf[b][1],4)}, {vr(xf[b],4)}, {cc(1)}")
        for d in range(2, 4):
            k(f"v_dot2c_f32_bf16 v{ssum}, v{xf[b]+d}, v{ones}")
            k(f"v_dot2c_f32_bf16 v{ssq}, v{xf[b]+d}, v{xf[b]+d}")
            for p in range(3): k(f"v_dot2c_f32_bf16 v{cs[p]}, v{wf[b][p]+d}, v{ones}")
        k(f"v_mfma_f32_32x32x16_bf16 {vr(acc[2],16)}, {vr(xf[b],4)}, {vr(wf[b][2],4)}, {cc(2)}")
    for r in [ssum, ssq] + cs: half_sum(k, r, t0)
    mean = ssum; rstd = ssq
    k(f"v_mul_f32 v{mean}, {f32(1/512)}, v{ssum}")
    k(f"v_mul_f32 v{t0}, v{mean}, v{mean}")
    k(f"v_mov_b32 v{t1}, {f32(1/512)}")
    k(f"v_fma_f32 v{t0}, v{ssq}, v{t1}, -v{t0}")
    k(f"v_max_f32 v{t0}, 0, v{t0}")
    k(f"v_add_f32 v{t0}, {f32(1e-5)}, v{t0}")
    k(f"v_rsq_f32 v{rstd}, v{t0}")
    k("s_lshl_b32 s35, s24, 9")
    k("s_add_u32 s35, s35, 98304")
    k(f"v_and_b32 v{t0}, 31, v{lane}")
    k(f"v_lshlrev_b32 v{t0}, 2, v{t0}")
    k(f"v_add_u32 v{t0}, s35, v{t0}")
    k(f"ds_write_b32 v{t0}, v{cs[0]} offset:0")
    k(f"ds_write_b32 v{t0}, v{cs[1]} offset:128")
    k(f"ds_write_b32 v{t0}, v{mean} offset:256")
    k(f"ds_write_b32 v{t0}, v{rstd} offset:384")
    k(f"v_lshrrev_b32 v{t1}, 5, v{lane}")
    k(f"v_lshlrev_b32 v{t1}, 4, v{t1}")
    k(f"v_add_u32 v{t1}, s35, v{t1}")
    rl = [A.get(16, 4) for _ in range(4)]
    k("s_waitcnt lgkmcnt(0)")
    for i in range(4):
        for a in range(4):
            k(f"ds_read_b128 {vr(rl[i]+4*a,4)}, v{t1} offset:{128*i + 32*a}")
    rq = A.get()
    k(f"v_mul_f32 v{rq}, {f32(QSCALE)}, v{rstd}")
    k("s_lshl_b32 s35, s27, 2")
    k("s_lshl_b32 s36, s30, 1")
    k("s_add_u32 s35, s35, s36")
    k("s_lshl_b32 s36, s28, 1")
    k("s_add_u32 s36, s36, s29")
    k("s_lshl_b32 s37, s35, 6")
    k("s_add_u32 s37, s37, s36")
    k("s_lshl_b32 s38, s37, 10")
    k("s_lshl_b32 s39, s37, 2")
    k(f"s_add_u32 s39, s39, {KN}")
    vst = A.get(); vstv = A.get()
    k(f"v_lshlrev_b32 v{vst}, 4, v{lane}")
    k(f"v_bfe_u32 v{t0}, v{lane}, 4, 1")
    k(f"v_lshlrev_b32 v{t0}, 16, v{t0}")
    k(f"v_lshrrev_b32 v{t1}, 5, v{lane}")
    k(f"v_lshl_add_u32 v{t0}, v{t1}, 8, v{t0}")
    k(f"v_and_b32 v{t1}, 15, v{lane}")
    k(f"v_lshl_add_u32 v{vstv}, v{t1}, 4, v{t0}")
    k("s_waitcnt lgkmcnt(0)")
    pk = [A.get(4, 4) for _ in range(6)]
    for r in range(16):
        k(f"v_fma_f32 v{acc[0]+r}, -v{mean}, v{rl[0]+r}, v{acc[0]+r}")
        k(f"v_mul_f32 v{acc[0]+r}, v{rq}, v{acc[0]+r}")
    for hh in range(2):
        for i in range(4):
            k(f"v_cvt_pk_bf16_f32 v{pk[hh]+i}, v{acc[0]+8*hh+2*i}, v{acc[0]+8*hh+2*i+1}")
        k(f"s_add_u32 s40, s38, {QF + hh*65536}")
        k(f"buffer_store_dwordx4 {vr(pk[hh],4)}, v{vst}, s[20:23], s40 offen")
    for r in range(16):
        k(f"v_fma_f32 v{acc[1]+r}, -v{mean}, v{rl[1]+r}, v{acc[1]+r}")
        k(f"v_mul_f32 v{acc[1]+r}, v{rstd}, v{acc[1]+r}")
    for hh in range(2):
        for i in range(4):
            k(f"v_cvt_pk_bf16_f32 v{pk[2+hh]+i}, v{acc[1]+8*hh+2*i}, v{acc[1]+8*hh+2*i+1}")
        k(f"s_add_u32 s40, s38, {KF + hh*65536}")
        k(f"buffer_store_dwordx4 {vr(pk[2+hh],4)}, v{vst}, s[20:23], s40 offen")
    for r in range(16):
        k(f"v_fma_f32 v{acc[2]+r}, -v{rl[2]+r}, v{cs[2]}, v{acc[2]+r}")
        k(f"v_mul_f32 v{acc[2]+r}, v{rl[3]+r}, v{acc[2]+r}")
    for tq in range(2):
        for i in range(4):
            k(f"v_cvt_pk_bf16_f32 v{pk[4+tq]+i}, v{acc[2]+8*tq+2*i}, v{acc[2]+8*tq+2*i+1}")
        k(f"s_add_u32 s40, s38, {VF + tq*512}")
        k(f"buffer_store_dwordx4 {vr(pk[4+tq],4)}, v{vstv}, s[20:23], s40 offen")
    kn = [A.get(), A.get()]
    for hh in range(2):
        k(f"v_mul_f32 v{kn[hh]}, v{acc[1]+8*hh}, v{acc[1]+8*hh}")
        for r in range(1, 8):
            k(f"v_fmac_f32 v{kn[hh]}, v{acc[1]+8*hh+r}, v{acc[1]+8*hh+r}")
    for hh in range(2): half_sum(k, kn[hh], t0)
    for sh in (1, 2, 4, 8):
        for hh in range(2):
            k(f"v_max_f32_dpp v{kn[hh]}, v{kn[hh]}, v{kn[hh]} row_shr:{sh} row_mask:0xf bank_mask:0xf bound_ctrl:0")
    for hh in range(2):
        k(f"v_max_f32_dpp v{kn[hh]}, v{kn[hh]}, v{kn[hh]} row_bcast:15 row_mask:0xa bank_mask:0xf")
    k(f"v_mov_b32 v{t0}, 0")
    k("s_mov_b32 exec_lo, 0x80000000")
    k("s_mov_b32 exec_hi, 0")
    k(f"buffer_store_dword v{kn[0]}, v{t0}, s[20:23], s39 offen")
    k(f"buffer_store_dword v{kn[1]}, v{t0}, s[20:23], s39 offen offset:256")
    k.label("qkv_end")
    k("s_endpgm")
    return k, 163840, 256

NCH = 8
def k2():
    k = Kernel("attn_kernel")
    A = Alloc(1)
    k("s_cmp_ge_u32 s2, 256")
    k("s_cbranch_scc1 attn_end")
    k("s_load_dwordx2 s[8:9], s[0:1], 72")
    lane = A.get(); t0 = A.get(); t1 = A.get(); t2 = A.get()
    k(f"v_and_b32 v{lane}, 63, v0")
    k(f"v_lshrrev_b32 v{t0}, 6, v0")
    k(f"v_readfirstlane_b32 s24, v{t0}")
    k("s_and_b32 s25, s2, 7")
    k("s_lshr_b32 s26, s2, 3")
    k("s_lshl_b32 s27, s25, 2")
    k("s_lshr_b32 s28, s26, 3")
    k("s_add_u32 s27, s27, s28")
    k("s_and_b32 s28, s26, 7")
    k("s_lshl_b32 s28, s28, 3")
    k("s_add_u32 s28, s28, s24")
    v16 = A.get()
    k(f"v_lshlrev_b32 v{v16}, 4, v{lane}")
    k("s_lshl_b32 s29, s27, 16")
    k("s_lshl_b32 s30, s24, 10")
    k("s_add_u32 s31, s29, s30")
    k("s_waitcnt lgkmcnt(0)")
    srd(k, 20, 8, 9, WS_SIZE)
    qf = A.get(4, 4); knv = A.get()
    k("s_lshl_b32 s32, s28, 10")
    k("s_add_u32 s32, s32, s29")
    k(f"buffer_load_dwordx4 {vr(qf,4)}, v{v16}, s[20:23], s32 offen")
    k(f"v_lshlrev_b32 v{t0}, 2, v{lane}")
    k("s_lshl_b32 s33, s27, 8")
    k(f"s_add_u32 s33, s33, {KN}")
    k(f"buffer_load_dword v{knv}, v{t0}, s[20:23], s33 offen")
    for c in range(NCH):
        k(f"s_add_u32 s34, s31, {KF + c*8192}")
        k(f"s_add_u32 s35, s30, {c*8192}")
        k("s_mov_b32 m0, s35")
        k(f"buffer_load_dwordx4 v{v16}, s[20:23], s34 offen lds")
        k(f"s_add_u32 s34, s31, {VF + c*8192}")
        k(f"s_add_u32 s35, s30, {65536 + c*8192}")
        k("s_mov_b32 m0, s35")
        k(f"buffer_load_dwordx4 v{v16}, s[20:23], s34 offen lds")
    ak = A.get(); av = A.get()
    k(f"v_mov_b32 v{ak}, v{v16}")
    k(f"v_lshrrev_b32 v{t0}, 5, v{lane}")
    k(f"v_lshlrev_b32 v{t0}, 8, v{t0}")
    k(f"v_and_b32 v{t1}, 15, v{lane}")
    k(f"v_lshl_add_u32 v{t0}, v{t1}, 4, v{t0}")
    k(f"v_add_u32 v{av}, 65536, v{t0}")
    k("s_mov_b32 s36, 0xffff")
    k("s_mov_b32 s37, 0xffff")
    kf = [A.get(4, 4) for _ in range(2)]
    vf = [[A.get(4, 4) for t in range(2)] for _ in range(2)]
    for b in range(2):
        for t in range(2):
            for i in range(4): k(f"v_mov_b32 v{vf[b][t]+i}, {ONES_BF16}")
    S = [A.get(16, 4) for _ in range(2)]
    P = [A.get(8, 4) for _ in range(2)]
    O = A.get(16, 4)
    C = A.get(16, 4)
    for i in range(16): k(f"v_mov_b32 v{O+i}, 0")
    k(f"s_waitcnt vmcnt({2*NCH})")
    for sh in (1, 2, 4, 8):
        k(f"v_max_f32_dpp v{knv}, v{knv}, v{knv} row_shr:{sh} row_mask:0xf bank_mask:0xf bound_ctrl:0")
    k(f"v_max_f32_dpp v{knv}, v{knv}, v{knv} row_bcast:15 row_mask:0xa bank_mask:0xf")
    k(f"v_max_f32_dpp v{knv}, v{knv}, v{knv} row_bcast:31 row_mask:0xc bank_mask:0xf")
    k(f"v_readlane_b32 s38, v{knv}, 63")
    k(f"v_mov_b32 v{t0}, 0")
    for i in range(4): k(f"v_dot2c_f32_bf16 v{t0}, v{qf+i}, v{qf+i}")
    half_sum(k, t0, t1)
    k(f"v_mul_f32 v{t0}, s38, v{t0}")
    k(f"v_sqrt_f32 v{t0}, v{t0}")
    k(f"v_mov_b32 v{t1}, {f32(1.0 + 1/64)}")
    k(f"v_fma_f32 v{t0}, v{t0}, v{t1}, {f32(0.5) if False else '0.5'}")
    k(f"v_mov_b32 v{t1}, {f32(60.0)}")
    k(f"v_cmp_nle_f32 vcc, v{t0}, v{t1}")
    k(f"v_sub_f32 v{t0}, {f32(40.0)}, v{t0}")
    for i in range(16): k(f"v_mov_b32 v{C+i}, v{t0}")
    k("s_cbranch_vccnz attn_slow")

    def rd_k(blk_off, b):
        k(f"ds_read_b128 {vr(kf[b],4)}, v{ak} offset:{blk_off}")
    def rd_v(blk_off, b):
        k("s_mov_b64 exec, s[36:37]")
        k(f"ds_read_b128 {vr(vf[b][0],4)}, v{av} offset:{blk_off}")
        k(f"ds_read_b128 {vr(vf[b][1],4)}, v{av} offset:{blk_off+512}")
        k("s_mov_b64 exec, -1")

    k("s_mov_b32 s40, 0")
    k.label("attn_fast_loop")
    for c in range(NCH):
        k(f"s_cmp_lg_u32 s40, {c}")
        k(f"s_cbranch_scc1 attn_fw{c}")
        k(f"s_waitcnt vmcnt({2*(NCH-1-c)})")
        k.label(f"attn_fw{c}")
    k("s_barrier")
    rd_k(0, 0); rd_v(0, 0)
    k("s_waitcnt lgkmcnt(2)")
    k(f"v_mfma_f32_32x32x16_bf16 {vr(S[0],16)}, {vr(kf[0],4)}, {vr(qf,4)}, {vr(C,16)}")
    for j in range(8):
        b = j & 1; nb = 1 - b
        if j + 1 < 8:
            rd_k((j+1)*1024, nb); rd_v((j+1)*1024, nb)
            k("s_waitcnt lgkmcnt(2)")
            k(f"v_mfma_f32_32x32x16_bf16 {vr(S[nb],16)}, {vr(kf[nb],4)}, {vr(qf,4)}, {vr(C,16)}")
        else:
            k("s_waitcnt lgkmcnt(0)")
        for t in range(2):
            for i in range(8): k(f"v_exp_f32 v{S[b]+8*t+i}, v{S[b]+8*t+i}")
            for i in range(4): k(f"v_cvt_pk_bf16_f32 v{P[b]+4*t+i}, v{S[b]+8*t+2*i}, v{S[b]+8*t+2*i+1}")
            k(f"v_mfma_f32_32x32x16_bf16 {vr(O,16)}, {vr(vf[b][t],4)}, {vr(P[b]+4*t,4)}, {vr(O,16)}")
    k(f"v_add_u32 v{ak}, 8192, v{ak}")
    k(f"v_add_u32 v{av}, 8192, v{av}")
    k("s_add_u32 s40, s40, 1")
    k(f"s_cmp_lt_u32 s40, {NCH}")
    k("s_cbranch_scc1 attn_fast_loop")
    k.check_loop("attn_fast_loop")
    k("s_branch attn_fin")

    k.label("attn_slow")
    k.pad()
    mrun = A.get(); mnew = A.get(); alpha = A.get()
    k(f"v_mov_b32 v{mrun}, 0xff7fffff")
    k("s_mov_b32 s40, 0")
    k.label("attn_slow_loop")
    k("s_and_b32 s41, s40, 7")
    k("s_cmp_lg_u32 s41, 0")
    k("s_cbranch_scc1 attn_slow_nb")
    k("s_waitcnt vmcnt(0)")
    k("s_barrier")
    k.label("attn_slow_nb")
    rd_k(0, 0); rd_v(0, 0)
    k("s_waitcnt lgkmcnt(0)")
    k(f"v_mfma_f32_32x32x16_bf16 {vr(S[0],16)}, {vr(kf[0],4)}, {vr(qf,4)}, 0")
    s = S[0]
    k(f"v_max3_f32 v{mnew}, v{s}, v{s+1}, v{mrun}")
    for i in range(1, 8): k(f"v_max3_f32 v{mnew}, v{s+2*i}, v{s+2*i+1}, v{mnew}")
    k(f"v_mov_b32 v{t0}, v{mnew}")
    k(f"v_permlane32_swap_b32 v{mnew}, v{t0}")
    k(f"v_max_f32 v{mnew}, v{mnew}, v{t0}")
    k(f"v_sub_f32 v{alpha}, v{mrun}, v{mnew}")
    k(f"v_exp_f32 v{alpha}, v{alpha}")
    k(f"v_mov_b32 v{mrun}, v{mnew}")
    for i in range(16): k(f"v_sub_f32 v{s+i}, v{s+i}, v{mnew}")
    for i in range(16): k(f"v_exp_f32 v{s+i}, v{s+i}")
    for i in range(16): k(f"v_mul_f32 v{O+i}, v{alpha}, v{O+i}")
    for i in range(8): k(f"v_cvt_pk_bf16_f32 v{P[0]+i}, v{s+2*i}, v{s+2*i+1}")
    for t in range(2):
        k(f"v_mfma_f32_32x32x16_bf16 {vr(O,16)}, {vr(vf[0][t],4)}, {vr(P[0]+4*t,4)}, {vr(O,16)}")
    k(f"v_add_u32 v{ak}, 1024, v{ak}")
    k(f"v_add_u32 v{av}, 1024, v{av}")
    k("s_add_u32 s40, s40, 1")
    k("s_cmp_lt_u32 s40, 64")
    k.pad()
    k("s_cbranch_scc1 attn_slow_loop")
    k.check_loop("attn_slow_loop")

    k.label("attn_fin")
    k.pad()
    k(f"v_rcp_f32 v{t0}, v{O+8}")
    for i in range(8): k(f"v_mul_f32 v{O+i}, v{t0}, v{O+i}")
    for i in range(4): k(f"v_cvt_pk_bf16_f32 v{P[0]+i}, v{O+2*i}, v{O+2*i+1}")
    k("s_lshl_b32 s32, s28, 5")
    k("s_add_u32 s32, s32, s27")
    k("s_lshl_b32 s32, s32, 10")
    k(f"s_add_u32 s32, s32, {OF}")
    k(f"buffer_store_dwordx4 {vr(P[0],4)}, v{v16}, s[20:23], s32 offen")
    k.label("attn_end")
    k("s_endpgm")
    return k, 131072, 512

def k35(mode):
    name = "wo_kernel" if mode == "wo" else "down_kernel"
    pre = name[:-7]
    NKS = 32 if mode == "wo" else 112
    KS = NKS // 4
    XF = OF if mode == "wo" else GF
    DEPTH = min(KS, 15)
    k = Kernel(name)
    vm = VM()
    A = Alloc(1)
    k("s_cmp_ge_u32 s2, 256")
    k(f"s_cbranch_scc1 {pre}_end")
    k(f"s_load_dwordx2 s[6:7], s[0:1], {16 if mode=='wo' else 48}")
    k("s_load_dwordx2 s[8:9], s[0:1], 72")
    k(f"s_load_dwordx2 s[4:5], s[0:1], {0 if mode=='wo' else 56}")
    lane = A.get(); t0 = A.get(); t1 = A.get(); t2 = A.get()
    k(f"v_and_b32 v{lane}, 63, v0")
    k(f"v_lshrrev_b32 v{t0}, 6, v0")
    k(f"v_readfirstlane_b32 s24, v{t0}")
    k("s_and_b32 s25, s2, 7")
    k("s_lshr_b32 s26, s2, 3")
    k("s_and_b32 s27, s25, 1")
    k("s_lshl_b32 s27, s27, 2")
    k("s_and_b32 s28, s26, 3")
    k("s_add_u32 s27, s27, s28")
    k("s_lshr_b32 s28, s25, 1")
    k("s_lshl_b32 s28, s28, 3")
    k("s_lshr_b32 s29, s26, 2")
    k("s_add_u32 s28, s28, s29")
    v16 = A.get(); vwo = A.get()
    k(f"v_lshlrev_b32 v{v16}, 4, v{lane}")
    k(f"v_lshrrev_b32 v{t0}, 3, v{lane}")
    k(f"v_bfe_u32 v{t1}, v{lane}, 2, 1")
    k(f"v_bfe_u32 v{t2}, v{lane}, 4, 1")
    k(f"v_xor_b32 v{t1}, v{t1}, v{t2}")
    k(f"v_lshlrev_b32 v{t1}, 6, v{t1}")
    k(f"v_lshl_add_u32 v{t1}, v{t0}, 10, v{t1}")
    k(f"v_and_b32 v{t0}, 3, v{lane}")
    k(f"v_lshl_add_u32 v{vwo}, v{t0}, 4, v{t1}")
    k(f"s_mul_i32 s30, s24, {KS*16*1024}")
    k("s_lshl_b32 s31, s27, 7")
    k("s_add_u32 s30, s30, s31")
    k(f"s_mul_i32 s31, s28, {2*NKS*1024}")
    k(f"s_mul_i32 s32, s24, {KS*1024}")
    k("s_add_u32 s31, s31, s32")
    k(f"s_add_u32 s31, s31, {XF}")
    k(f"s_mul_i32 s32, s24, {DEPTH*2048}")
    k("s_waitcnt lgkmcnt(0)")
    srd(k, 12, 4, 5, 2048*1024)
    srd(k, 16, 6, 7, NKS*16*1024)
    srd(k, 20, 8, 9, WS_SIZE)
    xf = [[A.get(4, 4) for ti in range(2)] for _ in range(DEPTH)]
    def issue(s):
        sl = s % DEPTH
        for i in range(2):
            k(f"s_add_u32 s33, s30, {(16*s + 8*i)*1024}")
            k(f"s_add_u32 s34, s32, {sl*2048 + i*1024}")
            dma(k, vm, s, "s34", vwo, 16, "s33")
        for ti in range(2):
            k(f"s_add_u32 s33, s31, {(ti*NKS + s)*1024}")
            k(f"buffer_load_dwordx4 {vr(xf[sl][ti],4)}, v{v16}, s[20:23], s33 offen")
            vm.issue(s)
    for s in range(DEPTH): issue(s)
    k("s_lshr_b32 s35, s24, 1")
    k("s_and_b32 s36, s24, 1")
    k("s_lshl_b32 s37, s28, 1")
    k("s_add_u32 s37, s37, s36")
    k("s_lshl_b32 s38, s27, 2")
    k("s_lshl_b32 s39, s35, 1")
    k("s_add_u32 s38, s38, s39")
    k("s_lshl_b32 s39, s37, 5")
    k("s_add_u32 s39, s39, s38")
    k("s_lshl_b32 s39, s39, 10")
    k(f"s_add_u32 s39, s39, {HF}")
    k("s_lshl_b32 s40, s37, 15")
    k("s_lshl_b32 s41, s38, 5")
    k("s_add_u32 s40, s40, s41")
    vrm = A.get()
    k(f"v_and_b32 v{t0}, 31, v{lane}")
    k(f"v_lshrrev_b32 v{t1}, 5, v{lane}")
    k(f"v_lshlrev_b32 v{t1}, 3, v{t1}")
    k(f"v_lshl_add_u32 v{vrm}, v{t0}, 10, v{t1}")
    res = A.get(8, 4)
    aw = [A.get(), A.get()]
    k(f"v_bfe_u32 v{t0}, v{lane}, 2, 2")
    k(f"v_lshrrev_b32 v{t1}, 5, v{lane}")
    k(f"v_lshl_add_u32 v{t1}, v{t1}, 2, v{t0}")
    k(f"v_lshlrev_b32 v{t1}, 7, v{t1}")
    k(f"v_lshrrev_b32 v{t0}, 1, v{t0}")
    k(f"v_lshl_add_u32 v{t1}, v{t0}, 6, v{t1}")
    k(f"v_bfe_u32 v{t0}, v{lane}, 4, 1")
    k(f"v_lshl_add_u32 v{t1}, v{t0}, 5, v{t1}")
    k(f"v_and_b32 v{t0}, 3, v{lane}")
    k(f"v_lshl_add_u32 v{t1}, v{t0}, 3, v{t1}")
    k(f"v_add_u32 v{aw[0]}, s32, v{t1}")
    k(f"v_xor_b32 v{aw[1]}, 64, v{aw[0]}")
    wfr = [[A.get(4, 4) for fi in range(2)] for _ in range(2)]
    acc = [[A.get(16, 4) for ti in range(2)] for fi in range(2)]
    def reads(s):
        sl = s % DEPTH
        for fi in range(2):
            for e in range(2):
                k(f"ds_read_b64_tr_b16 {vr(wfr[s&1][fi]+2*e,2)}, v{aw[fi]} offset:{sl*2048 + e*1024}")
    res_issued = False
    def issue_res():
        if mode == "wo":
            for a in range(4):
                k(f"buffer_load_dwordx2 {vr(res+2*a,2)}, v{vrm}, s[12:15], s40 offen offset:{16*a}")
                vm.issue("res")
        else:
            for hh in range(2):
                k(f"buffer_load_dwordx4 {vr(res+4*hh,4)}, v{v16}, s[20:23], s39 offen offset:{1024*hh}")
                vm.issue("res")
    if DEPTH == KS:
        issue_res(); res_issued = True
    k(f"s_waitcnt vmcnt({vm.wait_for(0)})")
    reads(0)
    for s in range(KS):
        b = s & 1
        if s + 1 < KS:
            k(f"s_waitcnt vmcnt({vm.wait_for(s+1)})")
            reads(s + 1)
            k("s_waitcnt lgkmcnt(4)")
        else:
            k("s_waitcnt lgkmcnt(0)")
        for fi in range(2):
            for ti in range(2):
                c = "0" if s == 0 else vr(acc[fi][ti], 16)
                k(f"v_mfma_f32_32x32x16_bf16 {vr(acc[fi][ti],16)}, {vr(wfr[b][fi],4)}, {vr(xf[s%DEPTH][ti],4)}, {c}")
        if s + DEPTH < KS:
            issue(s + DEPTH)
            if s + DEPTH == KS - 1:
                issue_res(); res_issued = True
    assert res_issued
    k("s_barrier")
    k("s_lshl_b32 s33, s24, 12")
    k(f"v_add_u32 v{t0}, s33, v{v16}")
    for fi in range(2):
        for ti in range(2):
            q = 2*fi + ti
            for a in range(4):
                k(f"ds_write_b128 v{t0}, {vr(acc[fi][ti]+4*a,4)} offset:{q*16384 + a*1024}")
    k("s_waitcnt lgkmcnt(0)")
    k("s_barrier")
    k("s_lshl_b32 s33, s24, 14")
    k(f"v_add_u32 v{t0}, s33, v{v16}")
    flat = [acc[0][0], acc[0][1], acc[1][0], acc[1][1]]
    for w in range(4):
        for a in range(4):
            k(f"ds_read_b128 {vr(flat[w]+4*a,4)}, v{t0} offset:{w*4096 + a*1024}")
    k("s_waitcnt lgkmcnt(0)")
    for r in range(16):
        k(f"v_add_f32 v{flat[0]+r}, v{flat[0]+r}, v{flat[1]+r}")
        k(f"v_add_f32 v{flat[2]+r}, v{flat[2]+r}, v{flat[3]+r}")
    for r in range(16):
        k(f"v_add_f32 v{flat[0]+r}, v{flat[0]+r}, v{flat[2]+r}")
    k("s_waitcnt vmcnt(0)")
    o = flat[0]; u = flat[1]
    for i in range(8):
        k(f"v_lshlrev_b32 v{u+2*i}, 16, v{res+i}")
        k(f"v_and_b32 v{u+2*i+1}, 0xffff0000, v{res+i}")
    for r in range(16): k(f"v_add_f32 v{o+r}, v{o+r}, v{u+r}")
    pk = flat[2]
    for i in range(8): k(f"v_cvt_pk_bf16_f32 v{pk+i}, v{o+2*i}, v{o+2*i+1}")
    if mode == "wo":
        for hh in range(2):
            k(f"buffer_store_dwordx4 {vr(pk+4*hh,4)}, v{v16}, s[20:23], s39 offen offset:{1024*hh}")
    else:
        for a in range(4):
            k(f"buffer_store_dwordx2 {vr(pk+2*a,2)}, v{vrm}, s[12:15], s40 offen offset:{16*a}")
    k.label(f"{pre}_end")
    k("s_endpgm")
    return k, max(4*DEPTH*2048, 65536), 256

def k4():
    k = Kernel("glu_kernel")
    vm = VM()
    A = Alloc(1)
    SLOT = 28928; UOFF = 14464
    k("s_cmp_ge_u32 s2, 256")
    k("s_cbranch_scc1 glu_end")
    k("s_load_dwordx4 s[4:7], s[0:1], 32")
    k("s_load_dwordx2 s[8:9], s[0:1], 72")
    lane = A.get(); t0 = A.get(); t1 = A.get(); t2 = A.get()
    k(f"v_and_b32 v{lane}, 63, v0")
    k(f"v_lshrrev_b32 v{t0}, 6, v0")
    k(f"v_readfirstlane_b32 s24, v{t0}")
    k("s_and_b32 s25, s2, 7")
    k("s_lshr_b32 s26, s2, 3")
    k("s_and_b32 s27, s25, 3")
    k("s_lshl_b32 s27, s27, 2")
    k("s_and_b32 s28, s26, 3")
    k("s_add_u32 s27, s27, s28")
    k("s_lshr_b32 s28, s25, 2")
    k("s_lshl_b32 s28, s28, 3")
    k("s_lshr_b32 s29, s26, 2")
    k("s_add_u32 s28, s28, s29")
    v16 = A.get()
    k(f"v_lshlrev_b32 v{v16}, 4, v{lane}")
    vw = [A.get() for _ in range(7)]
    m14, sh14 = magic(14, 448)
    for i in range(7):
        k(f"v_add_u32 v{t0}, {64*i}, v{lane}")
        k(f"v_mul_u32_u24 v{t1}, {m14}, v{t0}")
        k(f"v_lshrrev_b32 v{t1}, {sh14}, v{t1}")
        k(f"v_mul_u32_u24 v{t2}, 14, v{t1}")
        k(f"v_sub_u32 v{t0}, v{t0}, v{t2}")
        k(f"v_mul_u32_u24 v{t1}, 3584, v{t1}")
        k(f"v_lshl_add_u32 v{vw[i]}, v{t0}, 4, v{t1}")
    k("s_and_b32 s29, s24, 1")
    k(f"s_mul_i32 s30, s29, {32*3584}")
    k("s_mul_i32 s31, s27, 224")
    k("s_add_u32 s30, s30, s31")
    k("s_lshr_b32 s31, s24, 1")
    k(f"s_mul_i32 s32, s31, {UOFF}")
    k("s_mul_i32 s33, s29, 7168")
    k("s_add_u32 s32, s32, s33")
    k("s_lshl_b32 s33, s28, 2")
    k("s_add_u32 s33, s33, s24")
    k("s_lshl_b32 s34, s33, 15")
    k(f"s_add_u32 s34, s34, {HF}")
    k("s_waitcnt lgkmcnt(0)")
    k("s_cmp_eq_u32 s31, 0")
    k("s_cselect_b32 s4, s4, s6")
    k("s_cselect_b32 s5, s5, s7")
    srd(k, 16, 4, 5, 512*3584)
    srd(k, 20, 8, 9, WS_SIZE)
    xf = [[A.get(4, 4) for s in range(4)] for _ in range(5)]
    def issue_chunk(c):
        sl = c % 5
        for s in range(4):
            k(f"s_add_u32 s35, s34, {(4*c+s)*1024}")
            k(f"buffer_load_dwordx4 {vr(xf[sl][s],4)}, v{v16}, s[20:23], s35 offen")
            vm.issue(c)
        k(f"s_add_u32 s35, s30, {c*64*3584}")
        for i in range(7):
            k(f"s_add_u32 s36, s32, {sl*SLOT + i*1024}")
            dma(k, vm, c, "s36", vw[i], 16, "s35")
    for c in range(5): issue_chunk(c)
    aw = [A.get() for _ in range(3)]
    k(f"v_bfe_u32 v{t0}, v{lane}, 2, 2")
    k(f"v_lshrrev_b32 v{t1}, 5, v{lane}")
    k(f"v_lshl_add_u32 v{t1}, v{t1}, 2, v{t0}")
    k(f"v_mul_u32_u24 v{t1}, 224, v{t1}")
    k(f"v_bfe_u32 v{t0}, v{lane}, 4, 1")
    k(f"v_mul_u32_u24 v{t0}, {UOFF}, v{t0}")
    k(f"v_add_u32 v{t1}, v{t1}, v{t0}")
    k(f"v_and_b32 v{t0}, 3, v{lane}")
    k(f"v_lshl_add_u32 v{aw[0]}, v{t0}, 3, v{t1}")
    k(f"v_add_u32 v{aw[1]}, {2*SLOT}, v{aw[0]}")
    k(f"v_add_u32 v{aw[2]}, {4*SLOT}, v{aw[0]}")
    ones = A.get(); ssum = A.get(); ssq = A.get(); cs = [A.get() for _ in range(7)]
    k(f"v_mov_b32 v{ones}, {ONES_BF16}")
    for r in [ssum, ssq] + cs: k(f"v_mov_b32 v{r}, 0")
    wf = [[A.get(4, 4) for p in range(7)] for _ in range(2)]
    acc = [16*p for p in range(7)]
    def reads(step):
        c, s = divmod(step, 4)
        sl = c % 5; wdw = sl >> 1; so = (sl & 1) * SLOT
        for p in range(7):
            for e in range(2):
                k(f"ds_read_b64_tr_b16 {vr(wf[step&1][p]+2*e,2)}, v{aw[wdw]} offset:{so + (16*s+8*e)*224 + p*32}")
    k(f"s_waitcnt vmcnt({vm.wait_for(0)})")
    k("s_barrier")
    reads(0)
    for step in range(32):
        b = step & 1
        c, s = divmod(step, 4)
        x = xf[c % 5][s]
        if step + 1 < 32:
            if (step + 1) % 4 == 0:
                c1 = (step + 1) // 4
                k(f"s_waitcnt vmcnt({vm.wait_for(c1)})")
                k("s_barrier")
            reads(step + 1)
            k("s_waitcnt lgkmcnt(14)")
        else:
            k("s_waitcnt lgkmcnt(0)")
        for p in range(7):
            cc = "0" if step == 0 else vr(acc[p], 16, "a")
            k(f"v_mfma_f32_32x32x16_bf16 {vr(acc[p],16,'a')}, {vr(wf[b][p],4)}, {vr(x,4)}, {cc}")
            for d in range(4): k(f"v_dot2c_f32_bf16 v{cs[p]}, v{wf[b][p]+d}, v{ones}")
            if p < 4:
                k(f"v_dot2c_f32_bf16 v{ssum}, v{x+p}, v{ones}")
                k(f"v_dot2c_f32_bf16 v{ssq}, v{x+p}, v{x+p}")
        if (step + 1) % 4 == 0:
            c1 = (step + 1) // 4
            if c1 in (2, 3, 4): issue_chunk(c1 + 3)
    for r in [ssum, ssq] + cs: half_sum(k, r, t0)
    mean = ssum; rstd = ssq
    k(f"v_mul_f32 v{mean}, {f32(1/512)}, v{ssum}")
    k(f"v_mul_f32 v{t0}, v{mean}, v{mean}")
    k(f"v_mov_b32 v{t1}, {f32(1/512)}")
    k(f"v_fma_f32 v{t0}, v{ssq}, v{t1}, -v{t0}")
    k(f"v_max_f32 v{t0}, 0, v{t0}")
    var = A.get()
    k(f"v_add_f32 v{var}, {f32(1e-5)}, v{t0}")
    k(f"v_rsq_f32 v{rstd}, v{var}")
    k("s_lshl_b32 s35, s24, 10")
    k(f"s_add_u32 s35, s35, {3*SLOT}")
    k(f"v_and_b32 v{t0}, 31, v{lane}")
    k(f"v_lshlrev_b32 v{t0}, 2, v{t0}")
    k(f"v_add_u32 v{t0}, s35, v{t0}")
    for p in range(7): k(f"ds_write_b32 v{t0}, v{cs[p]} offset:{128*p}")
    k(f"v_lshrrev_b32 v{t1}, 5, v{lane}")
    k(f"v_lshlrev_b32 v{t1}, 4, v{t1}")
    ard = A.get()
    k(f"v_add_u32 v{ard}, s35, v{t1}")
    C1 = 2 * 0.7978845608028654 * LOG2E
    C2 = 0.044715
    cA = A.get(); cB = A.get()
    k(f"v_mul_f32 v{cB}, {f32(-C1)}, v{rstd}")
    k(f"v_mul_f32 v{cA}, v{rstd}, v{rstd}")
    k(f"v_mul_f32 v{cA}, v{cA}, v{cB}")
    k(f"v_mul_f32 v{cA}, {f32(C2)}, v{cA}")
    k("s_mul_i32 s36, s33, 112")
    k("s_mul_i32 s37, s27, 7")
    k("s_add_u32 s36, s36, s37")
    k("s_lshl_b32 s36, s36, 10")
    k(f"s_add_u32 s36, s36, {GF}")
    k("s_waitcnt lgkmcnt(0)")
    base = xf[0][0]
    for p in range(7):
        sb = base + (p & 1) * 40
        rl = sb; g = sb + 16; u = sb + 24; pk = sb + 32;
        tt = wf[p & 1][0]
        for a in range(4):
            k(f"ds_read_b128 {vr(rl+4*a,4)}, v{ard} offset:{128*p + 32*a}")
        for r in range(8):
            k(f"v_accvgpr_read_b32 v{g+r}, a{acc[p]+r}")
            k(f"v_accvgpr_read_b32 v{u+r}, a{acc[p]+8+r}")
        k("s_waitcnt lgkmcnt(0)")
        for r in range(8):
            k(f"v_fma_f32 v{g+r}, -v{mean}, v{rl+r}, v{g+r}")
            k(f"v_fma_f32 v{u+r}, -v{mean}, v{rl+8+r}, v{u+r}")
        for r in range(8): k(f"v_mul_f32 v{tt+r}, v{g+r}, v{g+r}")
        for r in range(8): k(f"v_fma_f32 v{tt+r}, v{tt+r}, v{cA}, v{cB}")
        for r in range(8): k(f"v_mul_f32 v{tt+r}, v{tt+r}, v{g+r}")
        for r in range(8): k(f"v_exp_f32 v{tt+r}, v{tt+r}")
        for r in range(8): k(f"v_mul_f32 v{g+r}, v{g+r}, v{u+r}")
        for r in range(8): k(f"v_fma_f32 v{tt+r}, v{tt+r}, v{var}, v{var}")
        for r in range(8): k(f"v_rcp_f32 v{tt+r}, v{tt+r}")
        for r in range(8): k(f"v_mul_f32 v{g+r}, v{g+r}, v{tt+r}")
        for i in range(4): k(f"v_cvt_pk_bf16_f32 v{pk+i}, v{g+2*i}, v{g+2*i+1}")
        k(f"s_add_u32 s37, s36, {p*1024}")
        k(f"buffer_store_dwordx4 {vr(pk,4)}, v{v16}, s[20:23], s37 offen")
    k.label("glu_end")
    k("s_endpgm")
    return k, 5*SLOT, 256

HEADER = open("sequential_preLN__softmax_full_mha__geglu_ffn__prompt.s.ref").read().split("; Override launch")[0]

def build(kernels):
    s = HEADER
    for k, lds, thr in kernels:
        s += f"; @launch kernel={k.name} grid=(256,1,1) block=({thr},1,1) lds={lds}\n"
    s += '.amdgcn_target "amdgcn-amd-amdhsa--gfx950"\n.text\n'
    for k, _, _ in kernels: s += k.text()
    s += '.section .rodata,"a"\n'
    for k, _, _ in kernels: s += ".p2align 6\n" + k.descriptor()
    return s

if __name__ == "__main__":
    ks = [k1(), k2(), k35("wo"), k4(), k35("down")]
    out = sys.argv[1] if len(sys.argv) > 1 else "sequential_preLN__softmax_full_mha__geglu_ffn__prompt.s"
    open(out, "w").write(build(ks))
    for k, lds, thr in ks:
        print(k.name, "regs(v,a,s)=", k.max_regs(), "lds", lds, "insts", len(k.ins), "nops", k.nops_added)
```
